```python
import torch

def _softmax(x, axis=-1):
    return torch.softmax(x, dim=axis)
def _gelu(x):
    return torch.nn.functional.gelu(x, approximate="tanh")
def _silu(x):
    return torch.nn.functional.silu(x)
def _sigmoid(x):
    return torch.sigmoid(x)
def _layernorm(x, axis=-1, eps=1e-5):
    m = x.mean(dim=axis, keepdim=True)
    v = x.var(dim=axis, keepdim=True, unbiased=False)
    return (x - m) / torch.sqrt(v + eps)
def _scatter_add(tgt, idx, src, axis=0):
    return tgt.clone().index_add_(axis, idx, src)
def _segment_sum(src, seg, n):
    out = torch.zeros((n,) + src.shape[1:], dtype=src.dtype)
    return out.index_add_(0, seg, src)
def _pad(x, pw):
    flat = tuple(v for pair in reversed(pw) for v in pair)
    return torch.nn.functional.pad(x, flat)

kernel_name = 'gated_mix__gqa_block_cached__swiglu_ffn__decode'

def setup_inputs():

    _w = (lambda a: (lambda t: t.to(torch.bfloat16) if t.is_floating_point() else t)(torch.as_tensor(a)))
    def _A_setup():
        B, Sq, D = 1, 1, 448
        Hq, Hkv, Sk, Dh = 16, 8, 65536, 256
        assert Hq % Hkv == 0, (Hq, Hkv)
        return {
            "x": _w((lambda *s: torch.randn(*s, dtype=torch.bfloat16) * 0.05)(B, Sq, D)),
            "k_cache": _w((lambda *s: torch.randn(*s, dtype=torch.bfloat16) * 6.4)(B, Hkv, Sk, Dh)),
            "v_cache": _w((lambda *s: torch.randn(*s, dtype=torch.bfloat16) * 0.2)(B, Hkv, Sk, Dh)),
            "wq": _w((lambda *s: torch.randn(*s, dtype=torch.bfloat16) * 6.4)(D, Hq * Dh) * (D ** -0.5)),
            "wo": _w((lambda *s: torch.randn(*s, dtype=torch.bfloat16) * 0.2)(Hq * Dh, D) * ((Hq * Dh) ** -0.5)),
        }
    _A_in = _A_setup()

    def _B_setup():
        B, S, D, F = 1, 1, 448, 1792
        return {
            "x": _w((lambda *s: torch.randn(*s, dtype=torch.bfloat16) * 0.05)(B, S, D)),
            "w_gate": _w((lambda *s: torch.randn(*s, dtype=torch.bfloat16) * 0.05)(D, F)),
            "w_up": _w((lambda *s: torch.randn(*s, dtype=torch.bfloat16) * 0.05)(D, F)),
            "w_down": _w((lambda *s: torch.randn(*s, dtype=torch.bfloat16) * 0.05)(F, D)),
        }
    _B_in = _B_setup()

    return {
        "A_x": _A_in["x"],
        "A_k_cache": _A_in["k_cache"],
        "A_v_cache": _A_in["v_cache"],
        "A_wq": _A_in["wq"],
        "A_wo": _A_in["wo"],
        "B_x": _B_in["x"],
        "B_w_gate": _B_in["w_gate"],
        "B_w_up": _B_in["w_up"],
        "B_w_down": _B_in["w_down"],
        "gate_w": _w((lambda *s: torch.randn(*s, dtype=torch.bfloat16) * 0.05)(448) * 16.0),
    }

def reference(A_x, A_k_cache, A_v_cache, A_wq, A_wo, B_x, B_w_gate, B_w_up, B_w_down, gate_w):
    def _A_ref(x, k_cache, v_cache, wq, wo):
        B, Sq, D = x.shape
        Hq, Dh = 16, 256
        Hkv = k_cache.shape[1]
        rep = Hq // Hkv
        q = (lambda x, *d: x.permute(*d))((x @ wq).reshape(B, Sq, Hq, Dh), 0, 2, 1, 3)
        k = (lambda x, n, axis: torch.repeat_interleave(x, n, dim=axis))(k_cache, rep, axis=1)
        v = (lambda x, n, axis: torch.repeat_interleave(x, n, dim=axis))(v_cache, rep, axis=1)
        scores = torch.einsum("bhqd,bhkd->bhqk", q, k) * (Dh ** -0.5)
        p = _softmax(scores, axis=-1)
        o = torch.einsum("bhqk,bhkd->bhqd", p, v)
        return (lambda x, *d: x.permute(*d))(o, 0, 2, 1, 3).reshape(B, Sq, Hq * Dh) @ wo

    def _B_ref(x, w_gate, w_up, w_down):
        g = _silu(x @ w_gate)
        u = x @ w_up
        return (g * u) @ w_down

    x = A_x
    g = _sigmoid((x * gate_w).sum(-1, keepdims=True))
    a = _A_ref(x, A_k_cache, A_v_cache, A_wq, A_wo)
    b = _B_ref(x, B_w_gate, B_w_up, B_w_down)
    return g * a + (1 - g) * b
```

```python
import sys, math

NAME = "gated_mix__gqa_block_cached__swiglu_ffn__decode"

RING = 8
AUXA = 131072
AUXB = AUXA + 14336
QC   = AUXB + 14336
FLG  = QC + 3072
MISC = FLG + 512
M_NEXT = MISC
M_CNT  = MISC + 16
M_H    = MISC + 32
M_G    = MISC + 64
M_ML   = MISC + 96
LDS_BYTES = 163840
assert MISC + 512 == LDS_BYTES
W_QG = 0
W_ML = 0x8000
W_OG = 0x10000
W_PG = 0x200000
W_CTR = 0x300000
W_DIAG = 0x400000

CSCALE = 0.0625 * math.log2(math.e)
LOG2E = math.log2(math.e)
import struct
def f2u(x): return struct.unpack("<I", struct.pack("<f", x))[0]

class Gen:
    def __init__(self, N=20, N2=48, tail=8, diag=False, pol="nt", wpol="nt", name=NAME):
        self.N, self.N2, self.tail, self.diag, self.pol, self.wpol = N, N2, tail, diag, pol, wpol
        self.L = []
        self.name = name
        self.uid = 0
    def a(self, s): self.L.append("    " + s)
    def lab(self, s): self.L.append(f"L_{self.name[:6]}_{s}:")
    def ref(self, s): return f"L_{self.name[:6]}_{s}"
    def c(self, s): self.L.append("    ; " + s)
    def new(self, p):
        self.uid += 1
        return f"{p}{self.uid}"

    def srd(self, d, lo, size):
        a = self.a
        a(f"s_mov_b32 s{d}, s{lo}")
        a(f"s_and_b32 s{d+1}, s{lo+1}, 0xffff")
        a(f"s_mov_b32 s{d+2}, {size:#x}")
        a(f"s_mov_b32 s{d+3}, 0x20000")

    def stamp(self, idx, vt=250):
        if not self.diag: return
        a = self.a
        a("s_waitcnt lgkmcnt(0)")
        a("s_memrealtime s[98:99]")
        a("s_lshl_b32 s97, s2, 6")
        a(f"s_add_u32 s97, s97, {W_DIAG + idx*4}")
        a("s_waitcnt lgkmcnt(0)")
        a(f"v_mov_b32 v{vt}, s97")
        a(f"v_mov_b32 v{vt+1}, s98")
        a("s_mov_b64 s[100:101], exec")
        a("s_mov_b64 exec, 1")
        a(f"global_store_dword v{vt}, v{vt+1}, s[28:29]")
        a("s_mov_b64 exec, s[100:101]")

    def budget(self, loop_label):
        a = self.a
        a("s_sub_u32 s96, s96, 1")
        a("s_cmp_gt_i32 s96, 0")
        a(f"s_cbranch_scc1 {loop_label}")

    def xreduce(self, op, v, t, rows8=False):
        a = self.a
        if rows8:
            a("s_nop 1")
            a(f"{op}_dpp v{v}, v{v}, v{v} row_ror:8 row_mask:0xf bank_mask:0xf")
        a(f"v_mov_b32 v{t}, v{v}")
        a("s_nop 1")
        a(f"v_permlane16_swap_b32 v{v}, v{t}")
        a(f"{op} v{v}, v{v}, v{t}")
        a(f"v_mov_b32 v{t}, v{v}")
        a("s_nop 1")
        a(f"v_permlane32_swap_b32 v{v}, v{t}")
        a(f"{op} v{v}, v{v}, v{t}")

    def rowreduce_add(self, vs):
        a = self.a
        for sh in (8, 4, 2, 1):
            a("s_nop 1")
            for v in vs:
                a(f"v_add_f32_dpp v{v}, v{v}, v{v} row_ror:{sh} row_mask:0xf bank_mask:0xf")

    def build(self):
        a, c, lab, ref = self.a, self.c, self.lab, self.ref
        a("s_cmp_ge_u32 s2, 256")
        a(f"s_cbranch_scc1 {ref('exit')}")
        a("s_load_dwordx16 s[4:19], s[0:1], 0")
        a("s_load_dwordx8 s[20:27], s[0:1], 64")
        a("s_load_dwordx2 s[28:29], s[0:1], 96")
        a("v_lshrrev_b32 v1, 6, v0")
        a("v_and_b32 v0, 63, v0")
        a("v_readfirstlane_b32 s30, v1")
        a("s_lshr_b32 s31, s2, 5")
        a("s_and_b32 s3, s2, 31")
        a("s_mov_b32 s96, 0x400000")
        a("s_cmp_eq_u32 s30, 0")
        a(f"s_cbranch_scc0 {ref('consumer')}")
        self.loader()
        lab("consumer")
        self.consumer()
        lab("exit")
        a("s_endpgm")
        return "\n".join(self.L)

    def loader(self):
        a, c, lab, ref = self.a, self.c, self.lab, self.ref
        N, N2, tail, pol = self.N, self.N2, self.tail, self.pol
        NT = 128
        c("===== loader wave =====")
        a("s_setprio 3")
        a(f"v_lshlrev_b32 v2, 3, v0")
        a(f"v_add_u32 v2, {FLG}, v2")
        a("v_mov_b32 v4, -64")
        a(f"v_mov_b32 v5, {NT}")
        a("ds_write_b64 v2, v[4:5]")
        a(f"v_mov_b32 v3, {MISC}")
        a("v_mov_b32 v20, 0")
        a("v_mov_b32 v21, 1")
        a("v_mov_b32 v22, 2")
        a("v_mov_b32 v23, 0")
        a("ds_write_b128 v3, v[20:23]")
        a("ds_write_b32 v3, v23 offset:16")
        a("v_lshrrev_b32 v6, 5, v0")
        a("v_and_b32 v7, 31, v0")
        a("v_lshlrev_b32 v1, 9, v6")
        for p in range(8):
            a(f"v_add_u32 v24, {2*p}, v6")
            a("v_xor_b32 v24, v24, v7")
            a(f"v_lshl_add_u32 v{8+p}, v24, 4, v1")
        for p in range(4):
            a(f"v_add_u32 v24, {2*p}, v6")
            a("v_lshlrev_b32 v24, 1, v24")
            a("v_xor_b32 v24, v24, v7")
            a(f"v_lshl_add_u32 v{16+p}, v24, 4, v1")
        a("s_lshl_b32 s48, s31, 25")
        a("s_lshl_b32 s49, s3, 13")
        a("s_add_u32 s48, s48, s49")
        a("s_mov_b32 s50, 0")
        a(f"s_mov_b32 s51, {RING}")
        a("s_mov_b32 s52, 0")
        a("s_waitcnt lgkmcnt(0)")
        self.srd(32, 6, 0x10000000)
        self.srd(36, 8, 0x10000000)
        a("s_barrier")
        self.stamp(0, 26)

        def signal(const):
            a(f"s_lshl_b32 s53, s50, 1")
            a(f"s_add_i32 s53, s53, {const}")
            a("v_max_i32 v4, s53, v4")
            a("ds_write_b32 v2, v4")

        def tile_loop(tag, endt, NN):
            lab(f"ld_{tag}")
            a("s_cmp_lt_u32 s50, s51")
            a(f"s_cbranch_scc1 {ref('ld_go_'+tag)}")
            lab(f"ld_spin_{tag}")
            a("ds_read_b96 v[20:22], v3")
            a("s_waitcnt lgkmcnt(0)")
            a("v_min3_u32 v20, v20, v21, v22")
            a("s_nop 0")
            a("v_readfirstlane_b32 s51, v20")
            a(f"s_add_u32 s51, s51, {RING}")
            a("s_cmp_lt_u32 s50, s51")
            a(f"s_cbranch_scc1 {ref('ld_go_'+tag)}")
            a("s_sleep 1")
            self.budget(ref('ld_spin_'+tag))
            lab(f"ld_go_{tag}")
            for i in range(16):
                isV = i >= 8
                p = i % 8
                a(f"s_waitcnt vmcnt({NN-1})")
                if (i + 1 - NN) % 8 == 0:
                    signal((i + 1 - NN) // 8)
                if p % 4 == 0:
                    a(f"s_add_u32 m0, s52, {i*1024}")
                    a(f"s_add_u32 s54, s48, {p*1024}")
                voff = f"v{16 + (p & 3)}" if isV else f"v{8+p}"
                srd = "s[36:39]" if isV else "s[32:35]"
                a(f"buffer_load_dwordx4 {voff}, {srd}, s54 offen offset:{(p%4)*1024} {pol} lds")
                if i == 8:
                    a("ds_read_b96 v[20:22], v3")
                if i == 13:
                    a("s_waitcnt lgkmcnt(0)")
                    a("v_min3_u32 v20, v20, v21, v22")
                if i == 14:
                    a("v_readfirstlane_b32 s51, v20")
                    a(f"s_add_u32 s51, s51, {RING}")
            a(f"s_add_u32 s48, s48, {32*8192}")
            a("s_add_u32 s50, s50, 1")
            a("s_add_u32 s52, s52, 16384")
            a(f"s_and_b32 s52, s52, {RING*16384-1}")
            a(f"s_cmp_lt_u32 s50, {endt}")
            a(f"s_cbranch_scc1 {ref('ld_'+tag)}")

        tile_loop("a", NT - tail, N)
        NL = N
        if tail:
            tile_loop("b", NT, N2)
            NL = N2
        self.srd(40, 12, 4096*896)
        self.srd(44, 20, 1792*896)
        a("v_lshlrev_b32 v1, 4, v0")
        a("s_mul_i32 s55, s2, 14336")
        a("s_and_b32 s56, s2, 7")
        a("s_mul_i32 s56, s56, 28")
        a("s_lshr_b32 s57, s2, 3")
        a("s_add_u32 s56, s56, s57")
        a("s_mul_i32 s56, s56, 7168")
        a("s_cmp_lt_u32 s57, 28")
        a(f"s_cselect_b32 s56, s56, {1792*896}")
        a("s_mov_b32 s58, -1")
        a("s_mov_b32 s59, 0xffffff")
        wl = [("wd", k) for k in range(8)] + [("wo", k) for k in range(16)]
        done_units = -10**9
        for i, (kind, k) in enumerate(wl):
            a(f"s_waitcnt vmcnt({NL-1})")
            u = (i + 1 - NL)
            if u % 8 == 0 and u <= 0:
                signal(u // 8)
                done_units = u // 8
            a("s_mov_b64 exec, s[58:59]")
            if kind == "wd":
                if k % 4 == 0 and k: a(f"s_add_u32 s56, s56, {4*896}")
                a(f"buffer_load_dwordx4 v[{32+4*k}:{35+4*k}], v1, s[44:47], s56 offen offset:{(k%4)*896} {self.wpol}")
            else:
                if k % 4 == 0 and k: a(f"s_add_u32 s55, s55, {4*896}")
                a(f"buffer_load_dwordx4 v[{192+4*k}:{195+4*k}], v1, s[40:43], s55 offen offset:{(k%4)*896} {self.wpol}")
            a("s_mov_b64 exec, -1")
        nw = len(wl)
        u = -((NL + 7) // 8)
        while u <= 0:
            if u > done_units and nw - 8*u < NL + 8:
                a(f"s_waitcnt vmcnt({min(63, nw - 8*u)})")
                signal(u)
            u += 1
        self.stamp(1, 26)
        a(f"ds_read_b128 v[8:11], v3 offset:{M_H-MISC}")
        a(f"ds_read_b128 v[12:15], v3 offset:{M_H-MISC+16}")
        a(f"ds_read_b96 v[4:6], v3 offset:{M_G-MISC}")
        a("s_waitcnt lgkmcnt(0)")
        a("v_readfirstlane_b32 s60, v6")
        a("v_readfirstlane_b32 s62, v4")
        a("v_readfirstlane_b32 s63, v5")
        a("s_not_b32 s61, s60")
        a("s_lshl_b32 s55, s2, 12")
        a(f"s_add_u32 s55, s55, {W_OG}")
        a("v_add_u32 v2, s55, v1")
        a("s_lshr_b32 s55, s2, 4")
        a("s_lshl_b32 s55, s55, 9")
        a(f"s_add_u32 s55, s55, {W_ML}")
        a("v_lshrrev_b32 v3, 3, v0")
        a("v_lshlrev_b32 v3, 4, v3")
        a("v_add_u32 v3, s55, v3")
        a(f"s_waitcnt vmcnt(16)" if not self.diag else "s_waitcnt vmcnt(0)")
        for k in range(8):
            a(f"v_mul_f32 v{8+k}, s63, v{8+k}")
        a("s_mov_b32 s57, 0xffff0000")
        for k in range(8):
            for d in range(4):
                src = 32 + 4*k + d
                a(f"v_lshlrev_b32 v24, 16, v{src}")
                a(f"v_and_b32 v25, s57, v{src}")
                if k == 0:
                    a(f"v_mul_f32 v{16+2*d}, v{8+k}, v24")
                    a(f"v_mul_f32 v{17+2*d}, v{8+k}, v25")
                else:
                    a(f"v_fmac_f32 v{16+2*d}, v{8+k}, v24")
                    a(f"v_fmac_f32 v{17+2*d}, v{8+k}, v25")
        a("s_waitcnt vmcnt(0)")
        for k in range(16):
            for d in range(4):
                src = 192 + 4*k + d
                a(f"v_lshlrev_b32 v{64+8*k+2*d}, 16, v{src}")
                a(f"v_and_b32 v{65+8*k+2*d}, s57, v{src}")
        for i in range(4):
            a(f"s_mov_b64 s[{64+2*i}:{65+2*i}], -1")
        lab("h1_poll")
        for i in range(4):
            sk = self.new("h1s")
            a(f"s_mov_b64 exec, s[{64+2*i}:{65+2*i}]")
            a(f"s_cbranch_execz {ref(sk)}")
            a(f"global_load_dwordx4 v[{192+4*i}:{195+4*i}], v2, s[28:29] offset:{i*1024} sc1")
            a(f"global_load_dwordx4 v[{208+4*i}:{211+4*i}], v3, s[28:29] offset:{i*128} sc1")
            lab(sk)
        a("s_mov_b64 exec, -1")
        a("s_waitcnt vmcnt(0)")
        for i in range(4):
            a(f"v_cmp_ne_u32 s[{64+2*i}:{65+2*i}], s60, v{193+4*i}")
            a(f"v_cmp_ne_u32 s[72:73], s61, v{195+4*i}")
            a(f"v_cmp_ne_u32 s[74:75], s60, v{209+4*i}")
            a(f"v_cmp_ne_u32 s[76:77], s61, v{211+4*i}")
            a(f"s_or_b64 s[72:73], s[72:73], s[74:75]")
            a(f"s_or_b64 s[{64+2*i}:{65+2*i}], s[{64+2*i}:{65+2*i}], s[76:77]")
            a(f"s_or_b64 s[{64+2*i}:{65+2*i}], s[{64+2*i}:{65+2*i}], s[72:73]")
        a("s_or_b64 s[72:73], s[64:65], s[66:67]")
        a("s_or_b64 s[74:75], s[68:69], s[70:71]")
        a("s_or_b64 s[72:73], s[72:73], s[74:75]")
        a(f"s_cbranch_scc0 {ref('h1_done')}")
        a("s_sleep 1")
        self.budget(ref('h1_poll'))
        lab("h1_done")
        self.stamp(2, 26)
        a("v_max_f32 v24, v208, v212")
        a("v_max3_f32 v24, v24, v216, v220")
        self.xreduce("v_max_f32", 24, 25, rows8=True)
        a(f"s_mov_b32 s57, {f2u(CSCALE):#x}")
        for i in range(4):
            a(f"v_sub_f32 v{26+i}, v{208+4*i}, v24")
        for i in range(4):
            a(f"v_mul_f32 v{26+i}, s57, v{26+i}")
        for i in range(4):
            a(f"v_exp_f32 v{26+i}, v{26+i}")
        a("s_nop 0")
        a("v_mul_f32 v8, v26, v192")
        a("v_mul_f32 v9, v26, v194")
        a("v_mul_f32 v10, v26, v210")
        for i in range(1, 4):
            a(f"v_fmac_f32 v8, v{26+i}, v{192+4*i}")
            a(f"v_fmac_f32 v9, v{26+i}, v{194+4*i}")
            a(f"v_fmac_f32 v10, v{26+i}, v{210+4*i}")
        a("s_nop 1")
        for v in (8, 9, 10):
            a(f"v_add_f32_dpp v{v}, v{v}, v{v} row_ror:8 row_mask:0xf bank_mask:0xf")
        for sw in ("v_permlane16_swap_b32", "v_permlane32_swap_b32"):
            for v in (8, 9, 10):
                a(f"v_mov_b32 v{v+4}, v{v}")
            a("s_nop 1")
            for v in (8, 9, 10):
                a(f"{sw} v{v}, v{v+4}")
            for v in (8, 9, 10):
                a(f"v_add_f32 v{v}, v{v}, v{v+4}")
        a("v_rcp_f32 v10, v10")
        a("s_nop 0")
        a("v_mul_f32 v8, v8, v10")
        a("v_mul_f32 v9, v9, v10")
        a("v_cvt_pk_bf16_f32 v8, v8, v9")
        a("v_and_b32 v9, 0xffff0000, v8")
        a("v_lshlrev_b32 v8, 16, v8")
        a("v_mul_f32 v9, s62, v9")
        a("v_mul_f32 v8, s62, v8")
        a("s_nop 0")
        for k in range(8):
            a(f"v_readlane_b32 s{64+2*k}, v8, {k}")
            a(f"v_readlane_b32 s{65+2*k}, v9, {k}")
        a("s_nop 1")
        for k in range(16):
            sp = 64 + (k & ~1)
            sel = "op_sel:[0,1,0] op_sel_hi:[1,1,1]" if k & 1 else "op_sel_hi:[1,0,1]"
            for d in range(4):
                a(f"v_pk_fma_f32 v[{16+2*d}:{17+2*d}], v[{64+8*k+2*d}:{65+8*k+2*d}], s[{sp}:{sp+1}], v[{16+2*d}:{17+2*d}] {sel}")
        a("s_mul_i32 s55, s2, 3584")
        a(f"s_add_u32 s55, s55, {W_PG}")
        a("v_add_u32 v2, s55, v1")
        for d in range(4):
            a(f"v_mov_b32 v{32+4*d}, v{16+2*d}")
            a(f"v_mov_b32 v{33+4*d}, s60")
            a(f"v_mov_b32 v{34+4*d}, v{17+2*d}")
            a(f"v_mov_b32 v{35+4*d}, s61")
        a("s_mov_b64 exec, s[58:59]")
        for d in range(4):
            a(f"global_store_dwordx4 v2, v[{32+4*d}:{35+4*d}], s[28:29] offset:{d*896} sc1")
        a("s_mov_b64 exec, -1")
        self.stamp(3, 26)
        a("s_lshr_b32 s57, s2, 3")
        a("s_cmp_lt_u32 s57, 28")
        a(f"s_cbranch_scc0 {ref('exit')}")
        a("s_and_b32 s56, s2, 7")
        a("s_mul_i32 s55, s56, 28")
        a("s_add_u32 s55, s55, s57")
        a("s_lshl_b32 s55, s55, 4")
        a(f"s_add_u32 s55, s55, {W_PG}")
        a("v_mul_u32_u24 v2, 3584, v0")
        a("v_add_u32 v2, s55, v2")
        for i in range(1, 4):
            a(f"v_add_u32 v{2+i}, {i*64*3584}, v2")
        for i in range(4):
            a(f"s_mov_b64 s[{64+2*i}:{65+2*i}], -1")
        lab("h2_poll")
        for i in range(4):
            sk = self.new("h2s")
            a(f"s_mov_b64 exec, s[{64+2*i}:{65+2*i}]")
            a(f"s_cbranch_execz {ref(sk)}")
            a(f"global_load_dwordx4 v[{192+4*i}:{195+4*i}], v{2+i}, s[28:29] sc1")
            lab(sk)
        a("s_mov_b64 exec, -1")
        a("s_waitcnt vmcnt(0)")
        for i in range(4):
            a(f"v_cmp_ne_u32 s[{64+2*i}:{65+2*i}], s60, v{193+4*i}")
            a(f"v_cmp_ne_u32 s[72:73], s61, v{195+4*i}")
            a(f"s_or_b64 s[{64+2*i}:{65+2*i}], s[{64+2*i}:{65+2*i}], s[72:73]")
        a("s_or_b64 s[72:73], s[64:65], s[66:67]")
        a("s_or_b64 s[74:75], s[68:69], s[70:71]")
        a("s_or_b64 s[72:73], s[72:73], s[74:75]")
        a(f"s_cbranch_scc0 {ref('h2_done')}")
        a("s_sleep 1")
        self.budget(ref('h2_poll'))
        lab("h2_done")
        a("v_add_f32 v8, v192, v196")
        a("v_add_f32 v9, v194, v198")
        a("v_add_f32 v10, v200, v204")
        a("v_add_f32 v11, v202, v206")
        a("v_add_f32 v8, v8, v10")
        a("v_add_f32 v9, v9, v11")
        self.rowreduce_add([8, 9])
        for sw in ("v_permlane16_swap_b32", "v_permlane32_swap_b32"):
            for v in (8, 9):
                a(f"v_mov_b32 v{v+4}, v{v}")
            a("s_nop 1")
            for v in (8, 9):
                a(f"{sw} v{v}, v{v+4}")
            for v in (8, 9):
                a(f"v_add_f32 v{v}, v{v}, v{v+4}")
        a("v_cvt_pk_bf16_f32 v8, v8, v9")
        a("s_and_b32 s55, s2, 1")
        a("s_mul_i32 s55, s55, 28")
        a("s_add_u32 s55, s55, s57")
        a("s_lshl_b32 s55, s55, 2")
        a("s_lshr_b32 s56, s56, 1")
        a("s_add_u32 s55, s55, s56")
        a("s_lshl_b32 s55, s55, 2")
        a("v_mov_b32 v2, s55")
        a("s_mov_b64 exec, 1")
        a("global_store_dword v2, v8, s[24:25]")
        self.stamp(4, 26)
        a("s_endpgm")

    def proj_mfma(self, vaddr, offs):
        a = self.a
        def rd(j):
            a(f"ds_read_b64_tr_b16 v[{128+4*j}:{129+4*j}], v{vaddr} offset:{offs(j, 0)}")
            a(f"ds_read_b64_tr_b16 v[{130+4*j}:{131+4*j}], v{vaddr} offset:{offs(j, 1)}")
        for j in range(7): rd(j)
        a("s_waitcnt lgkmcnt(0)")
        for j in range(7, 14): rd(j)
        for j in range(14):
            if j == 7: a("s_waitcnt lgkmcnt(0)")
            cc = "0" if j == 0 else "v[192:195]"
            a(f"v_mfma_f32_16x16x32_bf16 v[192:195], v[{128+4*j}:{131+4*j}], v[{64+4*j}:{67+4*j}], {cc}")
        a("s_nop 7")
        a("s_nop 3")

    def xfrags(self):
        a = self.a
        a("v_lshrrev_b32 v2, 4, v0")
        a("v_lshlrev_b32 v2, 4, v2")
        for j in range(14):
            a(f"global_load_dwordx4 v[{64+4*j}:{67+4*j}], v2, s[4:5] offset:{j*64}")

    def nonce_poll(self, tag):
        a, lab, ref = self.a, self.lab, self.ref
        a("v_mov_b32 v4, 0")
        lab(f"np_{tag}")
        a("global_load_dword v5, v4, s[26:27] sc1")
        a("s_waitcnt vmcnt(0)")
        a("v_readfirstlane_b32 s60, v5")
        a("s_cmp_lg_u32 s60, 0")
        a(f"s_cbranch_scc1 {ref('npd_'+tag)}")
        a("s_sleep 1")
        self.budget(ref('np_'+tag))
        lab(f"npd_{tag}")
        a("s_not_b32 s61, s60")

    def consumer(self):
        a, c, lab, ref = self.a, self.c, self.lab, self.ref
        c("===== consumer waves =====")
        a("s_waitcnt lgkmcnt(0)")
        a("s_barrier")
        a("s_cmp_eq_u32 s30, 2")
        a(f"s_cbranch_scc1 {ref('c_ffn')}")
        a("s_cmp_eq_u32 s30, 3")
        a(f"s_cbranch_scc1 {ref('c_gate')}")
        c("q projection")
        self.srd(40, 10, 448*8192)
        a("s_and_b32 s48, s2, 7")
        a("s_lshl_b32 s48, s48, 5")
        a("s_lshr_b32 s49, s2, 3")
        a("s_add_u32 s48, s48, s49")
        a("s_lshl_b32 s49, s48, 5")
        a("v_lshrrev_b32 v1, 1, v0")
        a("v_lshlrev_b32 v1, 13, v1")
        a("v_and_b32 v2, 1, v0")
        a("v_lshl_add_u32 v1, v2, 4, v1")
        for j in range(14):
            a(f"s_mov_b32 m0, {AUXB + j*1024}")
            if j: a(f"s_add_u32 s49, s49, {32*8192}")
            else: a("s_nop 0")
            a(f"buffer_load_dwordx4 v1, s[40:43], s49 offen {self.wpol} lds")
        self.xfrags()
        a("v_lshrrev_b32 v3, 4, v0")
        a("v_lshlrev_b32 v3, 8, v3")
        a("v_and_b32 v6, 15, v0")
        a("v_lshl_add_u32 v3, v6, 3, v3")
        a(f"v_add_u32 v3, {AUXB}, v3")
        self.nonce_poll("q")
        self.proj_mfma(3, lambda j, hh: j*1024 + hh*128)
        a("v_cvt_pk_bf16_f32 v8, v192, v193")
        a("v_mov_b32 v9, s60")
        a("v_cvt_pk_bf16_f32 v10, v194, v195")
        a("v_mov_b32 v11, s61")
        a("s_lshl_b32 s48, s48, 6")
        a(f"s_add_u32 s48, s48, {W_QG}")
        a("v_and_b32 v2, 48, v0")
        a("v_add_u32 v2, s48, v2")
        a("s_mov_b32 s48, 0x00010001")
        a("s_mov_b32 s49, 0x00010001")
        a("s_mov_b64 exec, s[48:49]")
        a("global_store_dwordx4 v2, v[8:11], s[28:29] sc1")
        a("s_mov_b64 exec, -1")
        self.stamp(5)
        a(f"s_branch {ref('c_join')}")
        lab("c_ffn")
        c("ffn hidden")
        self.srd(40, 16, 448*3584)
        self.srd(44, 18, 448*3584)
        a("s_and_b32 s48, s2, 7")
        a("s_mul_i32 s48, s48, 28")
        a("s_lshr_b32 s49, s2, 3")
        a("s_add_u32 s48, s48, s49")
        a("s_lshl_b32 s48, s48, 4")
        a("s_cmp_lt_u32 s49, 28")
        a(f"s_cselect_b32 s48, s48, {448*3584}")
        a("v_mul_u32_u24 v1, 3584, v0")
        for j in range(7):
            a(f"s_mov_b32 m0, {AUXA + j*1024}")
            if j: a(f"s_add_u32 s48, s48, {64*3584}")
            else: a("s_nop 0")
            a(f"buffer_load_dwordx4 v1, s[40:43], s48 offen {self.wpol} lds")
            a(f"s_mov_b32 m0, {AUXA + 7168 + j*1024}")
            a("s_nop 0")
            a(f"buffer_load_dwordx4 v1, s[44:47], s48 offen {self.wpol} lds")
        self.xfrags()
        a("v_lshrrev_b32 v3, 4, v0")
        a("v_lshlrev_b32 v3, 7, v3")
        a("v_bfe_u32 v6, v0, 2, 2")
        a("v_lshl_add_u32 v3, v6, 4, v3")
        a("v_and_b32 v6, 1, v0")
        a("v_lshl_add_u32 v3, v6, 3, v3")
        a("v_bfe_u32 v6, v0, 1, 1")
        a("v_mul_u32_u24 v6, 7168, v6")
        a("v_add_u32 v3, v3, v6")
        a(f"v_add_u32 v3, {AUXA}, v3")
        self.nonce_poll("f")
        self.proj_mfma(3, lambda j, hh: j*512 + hh*64)
        a("v_cvt_pk_bf16_f32 v8, v192, v193")
        a("v_cvt_pk_bf16_f32 v9, v194, v195")
        a("v_mov_b32 v10, v8")
        a("v_mov_b32 v11, v9")
        a("s_nop 1")
        a("v_permlane32_swap_b32 v8, v10")
        a("v_permlane32_swap_b32 v9, v11")
        a("s_mov_b32 s48, 0xffff0000")
        a("v_lshlrev_b32 v12, 16, v8")
        a("v_and_b32 v13, s48, v8")
        a("v_lshlrev_b32 v14, 16, v9")
        a("v_and_b32 v15, s48, v9")
        a(f"s_mov_b32 s49, {f2u(-LOG2E):#x}")
        for r in range(4): a(f"v_mul_f32 v{16+r}, s49, v{12+r}")
        for r in range(4): a(f"v_exp_f32 v{16+r}, v{16+r}")
        a("s_nop 0")
        for r in range(4): a(f"v_add_f32 v{16+r}, 1.0, v{16+r}")
        for r in range(4): a(f"v_rcp_f32 v{16+r}, v{16+r}")
        a("s_nop 0")
        for r in range(4): a(f"v_mul_f32 v{12+r}, v{12+r}, v{16+r}")
        a("v_cvt_pk_bf16_f32 v8, v12, v13")
        a("v_cvt_pk_bf16_f32 v9, v14, v15")
        a("v_lshlrev_b32 v12, 16, v8")
        a("v_and_b32 v13, s48, v8")
        a("v_lshlrev_b32 v14, 16, v9")
        a("v_and_b32 v15, s48, v9")
        a("v_lshlrev_b32 v16, 16, v10")
        a("v_and_b32 v17, s48, v10")
        a("v_lshlrev_b32 v18, 16, v11")
        a("v_and_b32 v19, s48, v11")
        for r in range(4): a(f"v_mul_f32 v{12+r}, v{12+r}, v{16+r}")
        a("v_cvt_pk_bf16_f32 v8, v12, v13")
        a("v_cvt_pk_bf16_f32 v9, v14, v15")
        a("v_lshlrev_b32 v12, 16, v8")
        a("v_and_b32 v13, s48, v8")
        a("v_lshlrev_b32 v14, 16, v9")
        a("v_and_b32 v15, s48, v9")
        a("v_and_b32 v2, 16, v0")
        a(f"v_add_u32 v2, {M_H}, v2")
        a("s_mov_b64 exec, 0x10001")
        a("ds_write_b128 v2, v[12:15]")
        a("s_mov_b64 exec, -1")
        a(f"s_branch {ref('c_join')}")
        lab("c_gate")
        c("nonce and gate")
        a("s_cmp_eq_u32 s2, 0")
        a(f"s_cbranch_scc0 {ref('c_gate2')}")
        a("s_memrealtime s[48:49]")
        a("v_mov_b32 v4, 0")
        a("s_waitcnt lgkmcnt(0)")
        a("s_or_b32 s50, s48, 1")
        a("v_mov_b32 v5, s50")
        a("s_mov_b64 exec, 1")
        a("global_store_dword v4, v5, s[26:27] sc1")
        a("s_mov_b64 exec, -1")
        lab("c_gate2")
        self.srd(40, 4, 896)
        self.srd(44, 22, 896)
        a("v_lshlrev_b32 v1, 4, v0")
        a("buffer_load_dwordx4 v[8:11], v1, s[40:43], 0 offen")
        a("buffer_load_dwordx4 v[12:15], v1, s[44:47], 0 offen")
        self.nonce_poll("g")
        a("s_mov_b32 s48, 0xffff0000")
        for d in range(4):
            a(f"v_lshlrev_b32 v16, 16, v{8+d}")
            a(f"v_and_b32 v17, s48, v{8+d}")
            a(f"v_lshlrev_b32 v18, 16, v{12+d}")
            a(f"v_and_b32 v19, s48, v{12+d}")
            a("v_mul_f32 v16, v16, v18")
            a("v_mul_f32 v17, v17, v19")
            a("v_cvt_pk_bf16_f32 v16, v16, v17")
            a("v_and_b32 v17, s48, v16")
            a("v_lshlrev_b32 v16, 16, v16")
            if d == 0:
                a("v_add_f32 v20, v16, v17")
            else:
                a("v_add_f32 v20, v20, v16")
                a("v_add_f32 v20, v20, v17")
        self.rowreduce_add([20])
        self.xreduce("v_add_f32", 20, 21)
        a("v_cvt_pk_bf16_f32 v20, v20, v20")
        a("v_lshlrev_b32 v20, 16, v20")
        a(f"s_mov_b32 s49, {f2u(-LOG2E):#x}")
        a("v_mul_f32 v20, s49, v20")
        a("v_exp_f32 v20, v20")
        a("s_nop 0")
        a("v_add_f32 v20, 1.0, v20")
        a("v_rcp_f32 v20, v20")
        a("s_nop 0")
        a("v_cvt_pk_bf16_f32 v20, v20, v20")
        a("v_lshlrev_b32 v20, 16, v20")
        a("v_sub_f32 v21, 1.0, v20")
        a("v_cvt_pk_bf16_f32 v21, v21, v21")
        a("v_lshlrev_b32 v21, 16, v21")
        a("v_mov_b32 v22, s60")
        a(f"v_mov_b32 v2, {M_G}")
        a("s_mov_b64 exec, 1")
        a("ds_write_b96 v2, v[20:22]")
        a("s_mov_b64 exec, -1")
        lab("c_join")
        c("gather q")
        a("s_lshl_b32 s48, s31, 11")
        a(f"s_add_u32 s48, s48, {W_QG}")
        a("v_lshlrev_b32 v1, 4, v0")
        a("v_add_u32 v1, s48, v1")
        a("v_and_b32 v2, 15, v0")
        a("v_lshrrev_b32 v3, 4, v0")
        a("v_lshlrev_b32 v4, 9, v2")
        for m in range(4):
            a(f"v_add_u32 v5, {4*m}, v3")
            a("v_xor_b32 v5, v5, v2")
            a(f"v_lshl_add_u32 v{8+m}, v5, 4, v4")
        a("v_lshrrev_b32 v2, 2, v0")
        a("v_lshlrev_b32 v4, 9, v2")
        a("v_and_b32 v5, 3, v0")
        a("v_lshl_add_u32 v4, v5, 3, v4")
        a("v_and_b32 v2, 7, v2")
        for m in range(8):
            a(f"v_xor_b32 v5, {m}, v2")
            a(f"v_lshl_add_u32 v{12+m}, v5, 5, v4")
        for r in range(64, 128):
            a(f"v_mov_b32 v{r}, 0")
        a(f"v_mov_b32 v200, {f2u(-3.0e38):#x}")
        a("v_mov_b32 v201, 0")
        a("v_mov_b32 v204, 0")
        a(f"v_mov_b32 v205, {FLG}")
        a("s_lshl_b32 s49, s30, 2")
        a(f"s_add_u32 s49, s49, {M_NEXT - 4}")
        a("v_mov_b32 v206, s49")
        a(f"s_mov_b32 s57, {f2u(CSCALE):#x}")
        a("s_mov_b32 s58, 0xffff0000")
        lab("q_poll")
        a("global_load_dwordx4 v[128:131], v1, s[28:29] sc1")
        a("global_load_dwordx4 v[132:135], v1, s[28:29] offset:1024 sc1")
        a("s_waitcnt vmcnt(0)")
        a("v_cmp_ne_u32 s[64:65], s60, v129")
        a("v_cmp_ne_u32 s[66:67], s61, v131")
        a("v_cmp_ne_u32 s[68:69], s60, v133")
        a("v_cmp_ne_u32 s[70:71], s61, v135")
        a("s_or_b64 s[64:65], s[64:65], s[66:67]")
        a("s_or_b64 s[68:69], s[68:69], s[70:71]")
        a("s_or_b64 s[64:65], s[64:65], s[68:69]")
        a(f"s_cbranch_scc0 {ref('q_done')}")
        a("s_sleep 2")
        self.budget(ref('q_poll'))
        lab("q_done")
        a("s_lshl_b32 s48, s30, 10")
        a(f"s_add_u32 s48, s48, {QC - 1024}")
        a("v_lshlrev_b32 v1, 3, v0")
        a("v_add_u32 v1, s48, v1")
        a("v_mov_b32 v129, v130")
        a("v_mov_b32 v133, v134")
        a("ds_write_b64 v1, v[128:129]")
        a("ds_write_b64 v1, v[132:133] offset:512")
        a("v_and_b32 v1, 1, v0")
        a("v_lshlrev_b32 v1, 9, v1")
        a("v_and_b32 v2, 48, v0")
        a("v_add3_u32 v1, v1, v2, s48")
        a("s_waitcnt lgkmcnt(0)")
        for j in range(8):
            a(f"ds_read_b128 v[{32+4*j}:{35+4*j}], v1 offset:{j*64}")
        if self.diag:
            a("s_cmp_eq_u32 s30, 1")
            a(f"s_cbranch_scc0 {ref('nostamp6')}")
            self.stamp(6)
            lab("nostamp6")
        a("s_sub_u32 s50, s30, 1")
        a("s_mov_b32 s51, -64")
        a("s_mov_b32 s52, -1")
        lab("c_loop")
        a("s_lshl_b32 s53, s50, 1")
        a("s_add_u32 s53, s53, 2")
        a("s_cmp_ge_i32 s51, s53")
        a(f"s_cbranch_scc1 {ref('c_go')}")
        lab("c_wait")
        a("ds_read_b64 v[2:3], v205")
        a("s_waitcnt lgkmcnt(0)")
        a("v_readfirstlane_b32 s51, v2")
        a("v_readfirstlane_b32 s52, v3")
        a("s_cmp_ge_i32 s51, s53")
        a(f"s_cbranch_scc1 {ref('c_go')}")
        a("s_cmp_ge_u32 s50, s52")
        a(f"s_cbranch_scc1 {ref('c_end')}")
        a("s_sleep 1")
        self.budget(ref('c_wait'))
        a(f"s_branch {ref('c_end')}")
        lab("c_go")
        a(f"s_and_b32 s54, s50, {RING-1}")
        a("s_lshl_b32 s54, s54, 14")
        for m in range(4):
            a(f"v_add_u32 v{20+m}, s54, v{8+m}")
        for j in range(8):
            a(f"ds_read_b128 v[{128+4*j}:{131+4*j}], v{20+(j&3)} offset:{(j>>2)*256}")
        for m in range(8):
            a(f"v_add_u32 v{24+m}, s54, v{12+m}")
        def vrd(t):
            a(f"ds_read_b64_tr_b16 v[{160+2*t}:{161+2*t}], v{24+(t&7)} offset:{8192+(t>>3)*256}")
        for t in range(7): vrd(t)
        a("s_waitcnt lgkmcnt(7)")
        for j in range(8):
            cc = "0" if j == 0 else "v[192:195]"
            a(f"v_mfma_f32_16x16x32_bf16 v[192:195], v[{128+4*j}:{131+4*j}], v[{32+4*j}:{35+4*j}], {cc}")
            vrd(7 + j)
        vrd(15)
        a("s_add_u32 s50, s50, 3")
        a("v_mov_b32 v207, s50")
        a("s_nop 7")
        a("v_cvt_pk_bf16_f32 v196, v192, v193")
        a("v_cvt_pk_bf16_f32 v197, v194, v195")
        a("v_lshlrev_b32 v192, 16, v196")
        a("v_and_b32 v193, s58, v196")
        a("v_lshlrev_b32 v194, 16, v197")
        a("v_and_b32 v195, s58, v197")
        a("v_max3_f32 v198, v192, v193, v194")
        a("v_max3_f32 v198, v198, v195, v200")
        self.xreduce("v_max_f32", 198, 199)
        a("v_cmp_gt_f32 vcc, v198, v200")
        a(f"s_cbranch_vccz {ref('c_nors')}")
        a("v_sub_f32 v199, v200, v198")
        a("v_mul_f32 v199, s57, v199")
        a("v_exp_f32 v208, v199")
        a("v_mov_b32 v200, v198")
        a("v_mul_f32 v204, s57, v198")
        a("v_mul_f32 v201, v201, v208")
        for r in range(64, 128, 2):
            a(f"v_pk_mul_f32 v[{r}:{r+1}], v[{r}:{r+1}], v[208:209] op_sel_hi:[1,0]")
        lab("c_nors")
        for r in range(4):
            a(f"v_fma_f32 v{192+r}, v{192+r}, s57, -v204")
        for r in range(4):
            a(f"v_exp_f32 v{192+r}, v{192+r}")
        a("s_nop 0")
        a("v_cvt_pk_bf16_f32 v202, v192, v193")
        a("v_cvt_pk_bf16_f32 v203, v194, v195")
        a("v_add_f32 v192, v192, v193")
        a("v_add_f32 v194, v194, v195")
        a("s_waitcnt lgkmcnt(0)")
        a("ds_write_b32 v206, v207")
        for t in range(16):
            a(f"v_mfma_f32_16x16x16_bf16 v[{64+4*t}:{67+4*t}], v[{160+2*t}:{161+2*t}], v[202:203], v[{64+4*t}:{67+4*t}]")
            if t == 0: a("v_add_f32 v201, v201, v192")
            if t == 1: a("v_add_f32 v201, v201, v194")
        a(f"s_branch {ref('c_loop')}")
        lab("c_end")
        self.xreduce("v_add_f32", 201, 199)
        a("s_lshl_b32 s48, s30, 11")
        a(f"s_add_u32 s48, s48, {AUXB - 2048}")
        a("v_and_b32 v1, 1, v0")
        a("v_lshlrev_b32 v2, 10, v1")
        a("v_and_b32 v3, 48, v0")
        a("v_add3_u32 v2, v2, v3, s48")
        a("s_lshl_b32 s48, s30, 4")
        a(f"s_add_u32 s48, s48, {M_ML - 16}")
        a("v_lshl_add_u32 v3, v1, 3, s48")
        a("s_mov_b32 s48, 0x00030003")
        a("s_mov_b32 s49, 0x00030003")
        a("s_mov_b64 exec, s[48:49]")
        for t in range(16):
            a(f"ds_write_b128 v2, v[{64+4*t}:{67+4*t}] offset:{t*64}")
        a("s_mov_b64 exec, 3")
        a("ds_write_b64 v3, v[200:201]")
        a("s_mov_b64 exec, 1")
        a(f"v_mov_b32 v2, {M_CNT}")
        a("v_mov_b32 v3, 1")
        a("s_waitcnt lgkmcnt(0)")
        a("ds_add_rtn_u32 v4, v2, v3")
        a("s_waitcnt lgkmcnt(0)")
        a("v_readfirstlane_b32 s48, v4")
        a("s_mov_b64 exec, -1")
        a("s_cmp_eq_u32 s48, 2")
        a(f"s_cbranch_scc0 {ref('exit')}")
        self.stamp(7)
        a("v_lshlrev_b32 v1, 3, v0")
        a(f"v_add_u32 v1, {AUXB}, v1")
        a(f"v_mov_b32 v2, {M_ML}")
        for cidx in range(3):
            a(f"ds_read_b128 v[{8+4*cidx}:{11+4*cidx}], v2 offset:{cidx*16}")
        for cidx in range(3):
            for hh in range(2):
                r = 32 + cidx*8 + hh*4
                a(f"ds_read2st64_b64 v[{r}:{r+3}], v1 offset0:{cidx*4+hh*2} offset1:{cidx*4+hh*2+1}")
        a("s_lshl_b32 s48, s31, 17")
        a("s_lshl_b32 s49, s3, 7")
        a("s_add_u32 s48, s48, s49")
        a(f"s_add_u32 s48, s48, {W_OG}")
        a("v_lshrrev_b32 v3, 3, v0")
        a("v_lshlrev_b32 v3, 12, v3")
        a("v_and_b32 v4, 7, v0")
        a("v_lshl_add_u32 v3, v4, 4, v3")
        a("v_add_u32 v3, s48, v3")
        for n in range(1, 4):
            a(f"v_add_u32 v{3+n}, {n*8*4096}, v3")
        a("s_waitcnt lgkmcnt(6)")
        a("v_max3_f32 v20, v8, v12, v16")
        a("v_max3_f32 v21, v10, v14, v18")
        for cidx in range(3):
            for hh in range(2):
                a(f"v_sub_f32 v{22+2*cidx+hh}, v{8+4*cidx+2*hh}, v{20+hh}")
        for r in range(22, 28): a(f"v_mul_f32 v{r}, s57, v{r}")
        for r in range(22, 28): a(f"v_exp_f32 v{r}, v{r}")
        a("s_nop 0")
        for hh in range(2):
            a(f"v_mul_f32 v{28+hh}, v{22+hh}, v{9+2*hh}")
            a(f"v_fmac_f32 v{28+hh}, v{24+hh}, v{13+2*hh}")
            a(f"v_fmac_f32 v{28+hh}, v{26+hh}, v{17+2*hh}")
        a("s_waitcnt lgkmcnt(0)")
        for n in range(4):
            hh = n >> 1
            g0 = 64 + 4*n
            for e in range(2):
                src = lambda cidx: 32 + cidx*8 + n*2 + e
                a(f"v_mul_f32 v{g0+2*e}, v{22+hh}, v{src(0)}")
                a(f"v_fmac_f32 v{g0+2*e}, v{24+hh}, v{src(1)}")
                a(f"v_fmac_f32 v{g0+2*e}, v{26+hh}, v{src(2)}")
            a(f"v_mov_b32 v{g0+1}, s60")
            a(f"v_mov_b32 v{g0+3}, s61")
            a(f"global_store_dwordx4 v{3+n}, v[{g0}:{g0+3}], s[28:29] sc1")
        a("v_cmp_eq_u32 vcc, 1, v0")
        a("s_lshl_b32 s48, s31, 10")
        a("s_lshl_b32 s49, s3, 4")
        a("s_add_u32 s48, s48, s49")
        a(f"s_add_u32 s48, s48, {W_ML}")
        a("v_cndmask_b32 v80, v20, v21, vcc")
        a("v_mov_b32 v81, s60")
        a("v_cndmask_b32 v82, v28, v29, vcc")
        a("v_mov_b32 v83, s61")
        a("v_lshl_add_u32 v2, v0, 9, s48")
        a("s_mov_b64 exec, 3")
        a("global_store_dwordx4 v2, v[80:83], s[28:29] sc1")
        self.stamp(8)
        a("s_endpgm")


HEAD = open("cdna_kernels/" + NAME + ".s.ref").read().split("; Override launch geometry")[0]

def emit(path, **kw):
    g = Gen(**kw)
    body = g.build()
    src = HEAD + f"""; Generated by gen/gen.py ({kw}).
; One workgroup per CU: wave 0 streams K/V tiles into an LDS ring (LDS-DMA), waves 1-3 run QK^T / online softmax / PV.
; @launch grid=(256,1,1) block=(256,1,1) lds={LDS_BYTES}
.amdgcn_target "amdgcn-amd-amdhsa--gfx950"
.text
.globl {NAME}_kernel
.p2align 8
.type {NAME}_kernel,@function
{NAME}_kernel:
{body}
.section .rodata,"a"
.p2align 6
.amdhsa_kernel {NAME}_kernel
  .amdhsa_next_free_vgpr 256
  .amdhsa_next_free_sgpr 102
  .amdhsa_accum_offset 256
  .amdhsa_group_segment_fixed_size 0
  .amdhsa_kernarg_size 104
  .amdhsa_user_sgpr_count 2
  .amdhsa_user_sgpr_kernarg_segment_ptr 1
  .amdhsa_system_sgpr_workgroup_id_x 1
.end_amdhsa_kernel
"""
    open(path, "w").write(src)

if __name__ == "__main__":
    out = sys.argv[1] if len(sys.argv) > 1 else "cdna_kernels/" + NAME + ".s"
    kw = {}
    for x in sys.argv[2:]:
        k, v = x.split("=")
        kw[k] = v if k in ("pol", "wpol") else int(v)
    emit(out, **kw)
```

```python
import sys, math

NAME = "gated_mix__gqa_block_cached__swiglu_ffn__decode"

RING = 8
AUXA = 131072
AUXB = AUXA + 14336
QC   = AUXB + 14336
FLG  = QC + 3072
MISC = FLG + 512
M_NEXT = MISC
M_CNT  = MISC + 16
M_H    = MISC + 32
M_G    = MISC + 64
M_ML   = MISC + 96
LDS_BYTES = 163840
assert MISC + 512 == LDS_BYTES
W_QG = 0
W_ML = 0x8000
W_OG = 0x10000
W_PG = 0x200000
W_CTR = 0x300000
W_DIAG = 0x400000

CSCALE = 0.0625 * math.log2(math.e)
LOG2E = math.log2(math.e)
import struct
def f2u(x): return struct.unpack("<I", struct.pack("<f", x))[0]

class Gen:
    def __init__(self, N=20, N2=48, tail=8, diag=False, pol="nt", wpol="nt", polv=None, name=NAME):
        self.N, self.N2, self.tail, self.diag, self.pol, self.wpol = N, N2, tail, diag, pol, wpol
        self.polv = pol if polv is None else polv
        self.pol, self.polv, self.wpol = [x.replace("_", " ").replace("def", "") for x in (self.pol, self.polv, self.wpol)]
        self.L = []
        self.name = name
        self.uid = 0
    def a(self, s): self.L.append("    " + s)
    def lab(self, s): self.L.append(f"L_{self.name[:6]}_{s}:")
    def ref(self, s): return f"L_{self.name[:6]}_{s}"
    def c(self, s): self.L.append("    ; " + s)
    def new(self, p):
        self.uid += 1
        return f"{p}{self.uid}"

    def srd(self, d, lo, size):
        a = self.a
        a(f"s_mov_b32 s{d}, s{lo}")
        a(f"s_and_b32 s{d+1}, s{lo+1}, 0xffff")
        a(f"s_mov_b32 s{d+2}, {size:#x}")
        a(f"s_mov_b32 s{d+3}, 0x20000")

    def stamp(self, idx, vt=250):
        if not self.diag: return
        a = self.a
        a("s_waitcnt lgkmcnt(0)")
        a("s_memrealtime s[98:99]")
        a("s_lshl_b32 s97, s2, 6")
        a(f"s_add_u32 s97, s97, {W_DIAG + idx*4}")
        a("s_waitcnt lgkmcnt(0)")
        a(f"v_mov_b32 v{vt}, s97")
        a(f"v_mov_b32 v{vt+1}, s98")
        a("s_mov_b64 s[100:101], exec")
        a("s_mov_b64 exec, 1")
        a(f"global_store_dword v{vt}, v{vt+1}, s[28:29]")
        a("s_mov_b64 exec, s[100:101]")

    def budget(self, loop_label):
        a = self.a
        a("s_sub_u32 s96, s96, 1")
        a("s_cmp_gt_i32 s96, 0")
        a(f"s_cbranch_scc1 {loop_label}")

    def xreduce(self, op, v, t, rows8=False):
        a = self.a
        if rows8:
            a("s_nop 1")
            a(f"{op}_dpp v{v}, v{v}, v{v} row_ror:8 row_mask:0xf bank_mask:0xf")
        a(f"v_mov_b32 v{t}, v{v}")
        a("s_nop 1")
        a(f"v_permlane16_swap_b32 v{v}, v{t}")
        a(f"{op} v{v}, v{v}, v{t}")
        a(f"v_mov_b32 v{t}, v{v}")
        a("s_nop 1")
        a(f"v_permlane32_swap_b32 v{v}, v{t}")
        a(f"{op} v{v}, v{v}, v{t}")

    def rowreduce_add(self, vs):
        a = self.a
        for sh in (8, 4, 2, 1):
            a("s_nop 1")
            for v in vs:
                a(f"v_add_f32_dpp v{v}, v{v}, v{v} row_ror:{sh} row_mask:0xf bank_mask:0xf")

    def build(self):
        a, c, lab, ref = self.a, self.c, self.lab, self.ref
        a("s_cmp_ge_u32 s2, 256")
        a(f"s_cbranch_scc1 {ref('exit')}")
        a("s_load_dwordx16 s[4:19], s[0:1], 0")
        a("s_load_dwordx8 s[20:27], s[0:1], 64")
        a("s_load_dwordx2 s[28:29], s[0:1], 96")
        a("v_lshrrev_b32 v1, 6, v0")
        a("v_and_b32 v0, 63, v0")
        a("v_readfirstlane_b32 s30, v1")
        a("s_lshr_b32 s31, s2, 5")
        a("s_and_b32 s3, s2, 31")
        a("s_mov_b32 s96, 0x400000")
        a("s_cmp_eq_u32 s30, 0")
        a(f"s_cbranch_scc0 {ref('consumer')}")
        self.loader()
        lab("consumer")
        self.consumer()
        lab("exit")
        a("s_endpgm")
        return "\n".join(self.L)

    def loader(self):
        a, c, lab, ref = self.a, self.c, self.lab, self.ref
        N, N2, tail, pol = self.N, self.N2, self.tail, self.pol
        NT = 128
        c("===== loader wave =====")
        a("s_setprio 3")
        a(f"v_lshlrev_b32 v2, 3, v0")
        a(f"v_add_u32 v2, {FLG}, v2")
        a("v_mov_b32 v4, -64")
        a(f"v_mov_b32 v5, {NT}")
        a("ds_write_b64 v2, v[4:5]")
        a(f"v_mov_b32 v3, {MISC}")
        a("v_mov_b32 v20, 0")
        a("v_mov_b32 v21, 1")
        a("v_mov_b32 v22, 2")
        a("v_mov_b32 v23, 0")
        a("ds_write_b128 v3, v[20:23]")
        a("ds_write_b32 v3, v23 offset:16")
        a("v_lshrrev_b32 v6, 5, v0")
        a("v_and_b32 v7, 31, v0")
        a("v_lshlrev_b32 v1, 9, v6")
        for p in range(8):
            a(f"v_add_u32 v24, {2*p}, v6")
            a("v_xor_b32 v24, v24, v7")
            a(f"v_lshl_add_u32 v{8+p}, v24, 4, v1")
        for p in range(4):
            a(f"v_add_u32 v24, {2*p}, v6")
            a("v_lshlrev_b32 v24, 1, v24")
            a("v_xor_b32 v24, v24, v7")
            a(f"v_lshl_add_u32 v{16+p}, v24, 4, v1")
        a("s_lshl_b32 s48, s31, 25")
        a("s_lshl_b32 s49, s3, 13")
        a("s_add_u32 s48, s48, s49")
        a("s_mov_b32 s50, 0")
        a(f"s_mov_b32 s51, {RING}")
        a("s_mov_b32 s52, 0")
        a("s_waitcnt lgkmcnt(0)")
        self.srd(32, 6, 0x10000000)
        self.srd(36, 8, 0x10000000)
        a("s_barrier")
        self.stamp(0, 26)

        def signal(const):
            a(f"s_lshl_b32 s53, s50, 1")
            a(f"s_add_i32 s53, s53, {const}")
            a("v_max_i32 v4, s53, v4")
            a("ds_write_b32 v2, v4")

        def tile_loop(tag, endt, NN):
            lab(f"ld_{tag}")
            a("s_cmp_lt_u32 s50, s51")
            a(f"s_cbranch_scc1 {ref('ld_go_'+tag)}")
            lab(f"ld_spin_{tag}")
            a("ds_read_b96 v[20:22], v3")
            a("s_waitcnt lgkmcnt(0)")
            a("v_min3_u32 v20, v20, v21, v22")
            a("s_nop 0")
            a("v_readfirstlane_b32 s51, v20")
            a(f"s_add_u32 s51, s51, {RING}")
            a("s_cmp_lt_u32 s50, s51")
            a(f"s_cbranch_scc1 {ref('ld_go_'+tag)}")
            a("s_sleep 1")
            self.budget(ref('ld_spin_'+tag))
            lab(f"ld_go_{tag}")
            for i in range(16):
                isV = i >= 8
                p = i % 8
                a(f"s_waitcnt vmcnt({NN-1})")
                if (i + 1 - NN) % 8 == 0:
                    signal((i + 1 - NN) // 8)
                if p % 4 == 0:
                    a(f"s_add_u32 m0, s52, {i*1024}")
                    a(f"s_add_u32 s54, s48, {p*1024}")
                voff = f"v{16 + (p & 3)}" if isV else f"v{8+p}"
                srd = "s[36:39]" if isV else "s[32:35]"
                a(f"buffer_load_dwordx4 {voff}, {srd}, s54 offen offset:{(p%4)*1024} {self.polv if isV else self.pol} lds")
                if i == 8:
                    a("ds_read_b96 v[20:22], v3")
                if i == 13:
                    a("s_waitcnt lgkmcnt(0)")
                    a("v_min3_u32 v20, v20, v21, v22")
                if i == 14:
                    a("v_readfirstlane_b32 s51, v20")
                    a(f"s_add_u32 s51, s51, {RING}")
            a(f"s_add_u32 s48, s48, {32*8192}")
            a("s_add_u32 s50, s50, 1")
            a("s_add_u32 s52, s52, 16384")
            a(f"s_and_b32 s52, s52, {RING*16384-1}")
            a(f"s_cmp_lt_u32 s50, {endt}")
            a(f"s_cbranch_scc1 {ref('ld_'+tag)}")

        tile_loop("a", NT - tail, N)
        NL = N
        if tail:
            tile_loop("b", NT, N2)
            NL = N2
        self.srd(40, 12, 4096*896)
        self.srd(44, 20, 1792*896)
        a("v_lshlrev_b32 v1, 4, v0")
        a("s_mul_i32 s55, s2, 14336")
        a("s_and_b32 s56, s2, 7")
        a("s_mul_i32 s56, s56, 28")
        a("s_lshr_b32 s57, s2, 3")
        a("s_add_u32 s56, s56, s57")
        a("s_mul_i32 s56, s56, 7168")
        a("s_cmp_lt_u32 s57, 28")
        a(f"s_cselect_b32 s56, s56, {1792*896}")
        a("s_mov_b32 s58, -1")
        a("s_mov_b32 s59, 0xffffff")
        wl = [("wd", k) for k in range(8)] + [("wo", k) for k in range(16)]
        done_units = -10**9
        for i, (kind, k) in enumerate(wl):
            a(f"s_waitcnt vmcnt({NL-1})")
            u = (i + 1 - NL)
            if u % 8 == 0 and u <= 0:
                signal(u // 8)
                done_units = u // 8
            a("s_mov_b64 exec, s[58:59]")
            if kind == "wd":
                if k % 4 == 0 and k: a(f"s_add_u32 s56, s56, {4*896}")
                a(f"buffer_load_dwordx4 v[{32+4*k}:{35+4*k}], v1, s[44:47], s56 offen offset:{(k%4)*896} {self.wpol}")
            else:
                if k % 4 == 0 and k: a(f"s_add_u32 s55, s55, {4*896}")
                a(f"buffer_load_dwordx4 v[{192+4*k}:{195+4*k}], v1, s[40:43], s55 offen offset:{(k%4)*896} {self.wpol}")
            a("s_mov_b64 exec, -1")
        nw = len(wl)
        u = -((NL + 7) // 8)
        while u <= 0:
            if u > done_units and nw - 8*u < NL + 8:
                a(f"s_waitcnt vmcnt({min(63, nw - 8*u)})")
                signal(u)
            u += 1
        self.stamp(1, 26)
        a(f"ds_read_b128 v[8:11], v3 offset:{M_H-MISC}")
        a(f"ds_read_b128 v[12:15], v3 offset:{M_H-MISC+16}")
        a(f"ds_read_b96 v[4:6], v3 offset:{M_G-MISC}")
        a("s_waitcnt lgkmcnt(0)")
        a("v_readfirstlane_b32 s60, v6")
        a("v_readfirstlane_b32 s62, v4")
        a("v_readfirstlane_b32 s63, v5")
        a("s_not_b32 s61, s60")
        a("s_lshl_b32 s55, s2, 12")
        a(f"s_add_u32 s55, s55, {W_OG}")
        a("v_add_u32 v2, s55, v1")
        a("s_lshr_b32 s55, s2, 4")
        a("s_lshl_b32 s55, s55, 9")
        a(f"s_add_u32 s55, s55, {W_ML}")
        a("v_lshrrev_b32 v3, 3, v0")
        a("v_lshlrev_b32 v3, 4, v3")
        a("v_add_u32 v3, s55, v3")
        a(f"s_waitcnt vmcnt(16)" if not self.diag else "s_waitcnt vmcnt(0)")
        for k in range(8):
            a(f"v_mul_f32 v{8+k}, s63, v{8+k}")
        a("s_mov_b32 s57, 0xffff0000")
        for k in range(8):
            for d in range(4):
                src = 32 + 4*k + d
                a(f"v_lshlrev_b32 v24, 16, v{src}")
                a(f"v_and_b32 v25, s57, v{src}")
                if k == 0:
                    a(f"v_mul_f32 v{16+2*d}, v{8+k}, v24")
                    a(f"v_mul_f32 v{17+2*d}, v{8+k}, v25")
                else:
                    a(f"v_fmac_f32 v{16+2*d}, v{8+k}, v24")
                    a(f"v_fmac_f32 v{17+2*d}, v{8+k}, v25")
        a("s_waitcnt vmcnt(0)")
        for k in range(16):
            for d in range(4):
                src = 192 + 4*k + d
                a(f"v_lshlrev_b32 v{64+8*k+2*d}, 16, v{src}")
                a(f"v_and_b32 v{65+8*k+2*d}, s57, v{src}")
        for i in range(4):
            a(f"s_mov_b64 s[{64+2*i}:{65+2*i}], -1")
        lab("h1_poll")
        for i in range(4):
            sk = self.new("h1s")
            a(f"s_mov_b64 exec, s[{64+2*i}:{65+2*i}]")
            a(f"s_cbranch_execz {ref(sk)}")
            a(f"global_load_dwordx4 v[{192+4*i}:{195+4*i}], v2, s[28:29] offset:{i*1024} sc1")
            a(f"global_load_dwordx4 v[{208+4*i}:{211+4*i}], v3, s[28:29] offset:{i*128} sc1")
            lab(sk)
        a("s_mov_b64 exec, -1")
        a("s_waitcnt vmcnt(0)")
        for i in range(4):
            a(f"v_cmp_ne_u32 s[{64+2*i}:{65+2*i}], s60, v{193+4*i}")
            a(f"v_cmp_ne_u32 s[72:73], s61, v{195+4*i}")
            a(f"v_cmp_ne_u32 s[74:75], s60, v{209+4*i}")
            a(f"v_cmp_ne_u32 s[76:77], s61, v{211+4*i}")
            a(f"s_or_b64 s[72:73], s[72:73], s[74:75]")
            a(f"s_or_b64 s[{64+2*i}:{65+2*i}], s[{64+2*i}:{65+2*i}], s[76:77]")
            a(f"s_or_b64 s[{64+2*i}:{65+2*i}], s[{64+2*i}:{65+2*i}], s[72:73]")
        a("s_or_b64 s[72:73], s[64:65], s[66:67]")
        a("s_or_b64 s[74:75], s[68:69], s[70:71]")
        a("s_or_b64 s[72:73], s[72:73], s[74:75]")
        a(f"s_cbranch_scc0 {ref('h1_done')}")
        a("s_sleep 1")
        self.budget(ref('h1_poll'))
        lab("h1_done")
        self.stamp(2, 26)
        a("v_max_f32 v24, v208, v212")
        a("v_max3_f32 v24, v24, v216, v220")
        self.xreduce("v_max_f32", 24, 25, rows8=True)
        a(f"s_mov_b32 s57, {f2u(CSCALE):#x}")
        for i in range(4):
            a(f"v_sub_f32 v{26+i}, v{208+4*i}, v24")
        for i in range(4):
            a(f"v_mul_f32 v{26+i}, s57, v{26+i}")
        for i in range(4):
            a(f"v_exp_f32 v{26+i}, v{26+i}")
        a("s_nop 0")
        a("v_mul_f32 v8, v26, v192")
        a("v_mul_f32 v9, v26, v194")
        a("v_mul_f32 v10, v26, v210")
        for i in range(1, 4):
            a(f"v_fmac_f32 v8, v{26+i}, v{192+4*i}")
            a(f"v_fmac_f32 v9, v{26+i}, v{194+4*i}")
            a(f"v_fmac_f32 v10, v{26+i}, v{210+4*i}")
        a("s_nop 1")
        for v in (8, 9, 10):
            a(f"v_add_f32_dpp v{v}, v{v}, v{v} row_ror:8 row_mask:0xf bank_mask:0xf")
        for sw in ("v_permlane16_swap_b32", "v_permlane32_swap_b32"):
            for v in (8, 9, 10):
                a(f"v_mov_b32 v{v+4}, v{v}")
            a("s_nop 1")
            for v in (8, 9, 10):
                a(f"{sw} v{v}, v{v+4}")
            for v in (8, 9, 10):
                a(f"v_add_f32 v{v}, v{v}, v{v+4}")
        a("v_rcp_f32 v10, v10")
        a("s_nop 0")
        a("v_mul_f32 v8, v8, v10")
        a("v_mul_f32 v9, v9, v10")
        a("v_cvt_pk_bf16_f32 v8, v8, v9")
        a("v_and_b32 v9, 0xffff0000, v8")
        a("v_lshlrev_b32 v8, 16, v8")
        a("v_mul_f32 v9, s62, v9")
        a("v_mul_f32 v8, s62, v8")
        a("s_nop 0")
        for k in range(8):
            a(f"v_readlane_b32 s{64+2*k}, v8, {k}")
            a(f"v_readlane_b32 s{65+2*k}, v9, {k}")
        a("s_nop 1")
        for k in range(16):
            sp = 64 + (k & ~1)
            sel = "op_sel:[0,1,0] op_sel_hi:[1,1,1]" if k & 1 else "op_sel_hi:[1,0,1]"
            for d in range(4):
                a(f"v_pk_fma_f32 v[{16+2*d}:{17+2*d}], v[{64+8*k+2*d}:{65+8*k+2*d}], s[{sp}:{sp+1}], v[{16+2*d}:{17+2*d}] {sel}")
        a("s_mul_i32 s55, s2, 3584")
        a(f"s_add_u32 s55, s55, {W_PG}")
        a("v_add_u32 v2, s55, v1")
        for d in range(4):
            a(f"v_mov_b32 v{32+4*d}, v{16+2*d}")
            a(f"v_mov_b32 v{33+4*d}, s60")
            a(f"v_mov_b32 v{34+4*d}, v{17+2*d}")
            a(f"v_mov_b32 v{35+4*d}, s61")
        a("s_mov_b64 exec, s[58:59]")
        for d in range(4):
            a(f"global_store_dwordx4 v2, v[{32+4*d}:{35+4*d}], s[28:29] offset:{d*896} sc1")
        a("s_mov_b64 exec, -1")
        self.stamp(3, 26)
        a("s_lshr_b32 s57, s2, 3")
        a("s_cmp_lt_u32 s57, 28")
        a(f"s_cbranch_scc0 {ref('exit')}")
        a("s_and_b32 s56, s2, 7")
        a("s_mul_i32 s55, s56, 28")
        a("s_add_u32 s55, s55, s57")
        a("s_lshl_b32 s55, s55, 4")
        a(f"s_add_u32 s55, s55, {W_PG}")
        a("v_mul_u32_u24 v2, 3584, v0")
        a("v_add_u32 v2, s55, v2")
        for i in range(1, 4):
            a(f"v_add_u32 v{2+i}, {i*64*3584}, v2")
        for i in range(4):
            a(f"s_mov_b64 s[{64+2*i}:{65+2*i}], -1")
        lab("h2_poll")
        for i in range(4):
            sk = self.new("h2s")
            a(f"s_mov_b64 exec, s[{64+2*i}:{65+2*i}]")
            a(f"s_cbranch_execz {ref(sk)}")
            a(f"global_load_dwordx4 v[{192+4*i}:{195+4*i}], v{2+i}, s[28:29] sc1")
            lab(sk)
        a("s_mov_b64 exec, -1")
        a("s_waitcnt vmcnt(0)")
        for i in range(4):
            a(f"v_cmp_ne_u32 s[{64+2*i}:{65+2*i}], s60, v{193+4*i}")
            a(f"v_cmp_ne_u32 s[72:73], s61, v{195+4*i}")
            a(f"s_or_b64 s[{64+2*i}:{65+2*i}], s[{64+2*i}:{65+2*i}], s[72:73]")
        a("s_or_b64 s[72:73], s[64:65], s[66:67]")
        a("s_or_b64 s[74:75], s[68:69], s[70:71]")
        a("s_or_b64 s[72:73], s[72:73], s[74:75]")
        a(f"s_cbranch_scc0 {ref('h2_done')}")
        a("s_sleep 1")
        self.budget(ref('h2_poll'))
        lab("h2_done")
        a("v_add_f32 v8, v192, v196")
        a("v_add_f32 v9, v194, v198")
        a("v_add_f32 v10, v200, v204")
        a("v_add_f32 v11, v202, v206")
        a("v_add_f32 v8, v8, v10")
        a("v_add_f32 v9, v9, v11")
        self.rowreduce_add([8, 9])
        for sw in ("v_permlane16_swap_b32", "v_permlane32_swap_b32"):
            for v in (8, 9):
                a(f"v_mov_b32 v{v+4}, v{v}")
            a("s_nop 1")
            for v in (8, 9):
                a(f"{sw} v{v}, v{v+4}")
            for v in (8, 9):
                a(f"v_add_f32 v{v}, v{v}, v{v+4}")
        a("v_cvt_pk_bf16_f32 v8, v8, v9")
        a("s_and_b32 s55, s2, 1")
        a("s_mul_i32 s55, s55, 28")
        a("s_add_u32 s55, s55, s57")
        a("s_lshl_b32 s55, s55, 2")
        a("s_lshr_b32 s56, s56, 1")
        a("s_add_u32 s55, s55, s56")
        a("s_lshl_b32 s55, s55, 2")
        a("v_mov_b32 v2, s55")
        a("s_mov_b64 exec, 1")
        a("global_store_dword v2, v8, s[24:25]")
        self.stamp(4, 26)
        a("s_endpgm")

    def proj_mfma(self, vaddr, offs):
        a = self.a
        def rd(j):
            a(f"ds_read_b64_tr_b16 v[{128+4*j}:{129+4*j}], v{vaddr} offset:{offs(j, 0)}")
            a(f"ds_read_b64_tr_b16 v[{130+4*j}:{131+4*j}], v{vaddr} offset:{offs(j, 1)}")
        for j in range(7): rd(j)
        a("s_waitcnt lgkmcnt(0)")
        for j in range(7, 14): rd(j)
        for j in range(14):
            if j == 7: a("s_waitcnt lgkmcnt(0)")
            cc = "0" if j == 0 else "v[192:195]"
            a(f"v_mfma_f32_16x16x32_bf16 v[192:195], v[{128+4*j}:{131+4*j}], v[{64+4*j}:{67+4*j}], {cc}")
        a("s_nop 7")
        a("s_nop 3")

    def xfrags(self):
        a = self.a
        a("v_lshrrev_b32 v2, 4, v0")
        a("v_lshlrev_b32 v2, 4, v2")
        for j in range(14):
            a(f"global_load_dwordx4 v[{64+4*j}:{67+4*j}], v2, s[4:5] offset:{j*64}")

    def nonce_poll(self, tag):
        a, lab, ref = self.a, self.lab, self.ref
        a("v_mov_b32 v4, 0")
        lab(f"np_{tag}")
        a("global_load_dword v5, v4, s[26:27] sc1")
        a("s_waitcnt vmcnt(0)")
        a("v_readfirstlane_b32 s60, v5")
        a("s_cmp_lg_u32 s60, 0")
        a(f"s_cbranch_scc1 {ref('npd_'+tag)}")
        a("s_sleep 1")
        self.budget(ref('np_'+tag))
        lab(f"npd_{tag}")
        a("s_not_b32 s61, s60")

    def consumer(self):
        a, c, lab, ref = self.a, self.c, self.lab, self.ref
        c("===== consumer waves =====")
        a("s_waitcnt lgkmcnt(0)")
        a("s_barrier")
        a("s_cmp_eq_u32 s30, 2")
        a(f"s_cbranch_scc1 {ref('c_ffn')}")
        a("s_cmp_eq_u32 s30, 3")
        a(f"s_cbranch_scc1 {ref('c_gate')}")
        c("q projection")
        self.srd(40, 10, 448*8192)
        a("s_and_b32 s48, s2, 7")
        a("s_lshl_b32 s48, s48, 5")
        a("s_lshr_b32 s49, s2, 3")
        a("s_add_u32 s48, s48, s49")
        a("s_lshl_b32 s49, s48, 5")
        a("v_lshrrev_b32 v1, 1, v0")
        a("v_lshlrev_b32 v1, 13, v1")
        a("v_and_b32 v2, 1, v0")
        a("v_lshl_add_u32 v1, v2, 4, v1")
        for j in range(14):
            a(f"s_mov_b32 m0, {AUXB + j*1024}")
            if j: a(f"s_add_u32 s49, s49, {32*8192}")
            else: a("s_nop 0")
            a(f"buffer_load_dwordx4 v1, s[40:43], s49 offen {self.wpol} lds")
        self.xfrags()
        a("v_lshrrev_b32 v3, 4, v0")
        a("v_lshlrev_b32 v3, 8, v3")
        a("v_and_b32 v6, 15, v0")
        a("v_lshl_add_u32 v3, v6, 3, v3")
        a(f"v_add_u32 v3, {AUXB}, v3")
        self.nonce_poll("q")
        self.proj_mfma(3, lambda j, hh: j*1024 + hh*128)
        a("v_cvt_pk_bf16_f32 v8, v192, v193")
        a("v_mov_b32 v9, s60")
        a("v_cvt_pk_bf16_f32 v10, v194, v195")
        a("v_mov_b32 v11, s61")
        a("s_lshl_b32 s48, s48, 6")
        a(f"s_add_u32 s48, s48, {W_QG}")
        a("v_and_b32 v2, 48, v0")
        a("v_add_u32 v2, s48, v2")
        a("s_mov_b32 s48, 0x00010001")
        a("s_mov_b32 s49, 0x00010001")
        a("s_mov_b64 exec, s[48:49]")
        a("global_store_dwordx4 v2, v[8:11], s[28:29] sc1")
        a("s_mov_b64 exec, -1")
        self.stamp(5)
        a(f"s_branch {ref('c_join')}")
        lab("c_ffn")
        c("ffn hidden")
        self.srd(40, 16, 448*3584)
        self.srd(44, 18, 448*3584)
        a("s_and_b32 s48, s2, 7")
        a("s_mul_i32 s48, s48, 28")
        a("s_lshr_b32 s49, s2, 3")
        a("s_add_u32 s48, s48, s49")
        a("s_lshl_b32 s48, s48, 4")
        a("s_cmp_lt_u32 s49, 28")
        a(f"s_cselect_b32 s48, s48, {448*3584}")
        a("v_mul_u32_u24 v1, 3584, v0")
        for j in range(7):
            a(f"s_mov_b32 m0, {AUXA + j*1024}")
            if j: a(f"s_add_u32 s48, s48, {64*3584}")
            else: a("s_nop 0")
            a(f"buffer_load_dwordx4 v1, s[40:43], s48 offen {self.wpol} lds")
            a(f"s_mov_b32 m0, {AUXA + 7168 + j*1024}")
            a("s_nop 0")
            a(f"buffer_load_dwordx4 v1, s[44:47], s48 offen {self.wpol} lds")
        self.xfrags()
        a("v_lshrrev_b32 v3, 4, v0")
        a("v_lshlrev_b32 v3, 7, v3")
        a("v_bfe_u32 v6, v0, 2, 2")
        a("v_lshl_add_u32 v3, v6, 4, v3")
        a("v_and_b32 v6, 1, v0")
        a("v_lshl_add_u32 v3, v6, 3, v3")
        a("v_bfe_u32 v6, v0, 1, 1")
        a("v_mul_u32_u24 v6, 7168, v6")
        a("v_add_u32 v3, v3, v6")
        a(f"v_add_u32 v3, {AUXA}, v3")
        self.nonce_poll("f")
        self.proj_mfma(3, lambda j, hh: j*512 + hh*64)
        a("v_cvt_pk_bf16_f32 v8, v192, v193")
        a("v_cvt_pk_bf16_f32 v9, v194, v195")
        a("v_mov_b32 v10, v8")
        a("v_mov_b32 v11, v9")
        a("s_nop 1")
        a("v_permlane32_swap_b32 v8, v10")
        a("v_permlane32_swap_b32 v9, v11")
        a("s_mov_b32 s48, 0xffff0000")
        a("v_lshlrev_b32 v12, 16, v8")
        a("v_and_b32 v13, s48, v8")
        a("v_lshlrev_b32 v14, 16, v9")
        a("v_and_b32 v15, s48, v9")
        a(f"s_mov_b32 s49, {f2u(-LOG2E):#x}")
        for r in range(4): a(f"v_mul_f32 v{16+r}, s49, v{12+r}")
        for r in range(4): a(f"v_exp_f32 v{16+r}, v{16+r}")
        a("s_nop 0")
        for r in range(4): a(f"v_add_f32 v{16+r}, 1.0, v{16+r}")
        for r in range(4): a(f"v_rcp_f32 v{16+r}, v{16+r}")
        a("s_nop 0")
        for r in range(4): a(f"v_mul_f32 v{12+r}, v{12+r}, v{16+r}")
        a("v_cvt_pk_bf16_f32 v8, v12, v13")
        a("v_cvt_pk_bf16_f32 v9, v14, v15")
        a("v_lshlrev_b32 v12, 16, v8")
        a("v_and_b32 v13, s48, v8")
        a("v_lshlrev_b32 v14, 16, v9")
        a("v_and_b32 v15, s48, v9")
        a("v_lshlrev_b32 v16, 16, v10")
        a("v_and_b32 v17, s48, v10")
        a("v_lshlrev_b32 v18, 16, v11")
        a("v_and_b32 v19, s48, v11")
        for r in range(4): a(f"v_mul_f32 v{12+r}, v{12+r}, v{16+r}")
        a("v_cvt_pk_bf16_f32 v8, v12, v13")
        a("v_cvt_pk_bf16_f32 v9, v14, v15")
        a("v_lshlrev_b32 v12, 16, v8")
        a("v_and_b32 v13, s48, v8")
        a("v_lshlrev_b32 v14, 16, v9")
        a("v_and_b32 v15, s48, v9")
        a("v_and_b32 v2, 16, v0")
        a(f"v_add_u32 v2, {M_H}, v2")
        a("s_mov_b64 exec, 0x10001")
        a("ds_write_b128 v2, v[12:15]")
        a("s_mov_b64 exec, -1")
        a(f"s_branch {ref('c_join')}")
        lab("c_gate")
        c("nonce and gate")
        a("s_cmp_eq_u32 s2, 0")
        a(f"s_cbranch_scc0 {ref('c_gate2')}")
        a("s_memrealtime s[48:49]")
        a("v_mov_b32 v4, 0")
        a("s_waitcnt lgkmcnt(0)")
        a("s_or_b32 s50, s48, 1")
        a("v_mov_b32 v6, s50")
        a("v_mov_b32 v7, 0")
        a("s_mov_b64 exec, 1")
        a("global_atomic_cmpswap v4, v[6:7], s[26:27] sc1")
        a("s_mov_b64 exec, -1")
        lab("c_gate2")
        self.srd(40, 4, 896)
        self.srd(44, 22, 896)
        a("v_lshlrev_b32 v1, 4, v0")
        a("buffer_load_dwordx4 v[8:11], v1, s[40:43], 0 offen")
        a("buffer_load_dwordx4 v[12:15], v1, s[44:47], 0 offen")
        self.nonce_poll("g")
        a("s_mov_b32 s48, 0xffff0000")
        for d in range(4):
            a(f"v_lshlrev_b32 v16, 16, v{8+d}")
            a(f"v_and_b32 v17, s48, v{8+d}")
            a(f"v_lshlrev_b32 v18, 16, v{12+d}")
            a(f"v_and_b32 v19, s48, v{12+d}")
            a("v_mul_f32 v16, v16, v18")
            a("v_mul_f32 v17, v17, v19")
            a("v_cvt_pk_bf16_f32 v16, v16, v17")
            a("v_and_b32 v17, s48, v16")
            a("v_lshlrev_b32 v16, 16, v16")
            if d == 0:
                a("v_add_f32 v20, v16, v17")
            else:
                a("v_add_f32 v20, v20, v16")
                a("v_add_f32 v20, v20, v17")
        self.rowreduce_add([20])
        self.xreduce("v_add_f32", 20, 21)
        a("v_cvt_pk_bf16_f32 v20, v20, v20")
        a("v_lshlrev_b32 v20, 16, v20")
        a(f"s_mov_b32 s49, {f2u(-LOG2E):#x}")
        a("v_mul_f32 v20, s49, v20")
        a("v_exp_f32 v20, v20")
        a("s_nop 0")
        a("v_add_f32 v20, 1.0, v20")
        a("v_rcp_f32 v20, v20")
        a("s_nop 0")
        a("v_cvt_pk_bf16_f32 v20, v20, v20")
        a("v_lshlrev_b32 v20, 16, v20")
        a("v_sub_f32 v21, 1.0, v20")
        a("v_cvt_pk_bf16_f32 v21, v21, v21")
        a("v_lshlrev_b32 v21, 16, v21")
        a("v_mov_b32 v22, s60")
        a(f"v_mov_b32 v2, {M_G}")
        a("s_mov_b64 exec, 1")
        a("ds_write_b96 v2, v[20:22]")
        a("s_mov_b64 exec, -1")
        lab("c_join")
        c("gather q")
        a("s_lshl_b32 s48, s31, 11")
        a(f"s_add_u32 s48, s48, {W_QG}")
        a("v_lshlrev_b32 v1, 4, v0")
        a("v_add_u32 v1, s48, v1")
        a("v_and_b32 v2, 15, v0")
        a("v_lshrrev_b32 v3, 4, v0")
        a("v_lshlrev_b32 v4, 9, v2")
        for m in range(4):
            a(f"v_add_u32 v5, {4*m}, v3")
            a("v_xor_b32 v5, v5, v2")
            a(f"v_lshl_add_u32 v{8+m}, v5, 4, v4")
        a("v_lshrrev_b32 v2, 2, v0")
        a("v_lshlrev_b32 v4, 9, v2")
        a("v_and_b32 v5, 3, v0")
        a("v_lshl_add_u32 v4, v5, 3, v4")
        a("v_and_b32 v2, 7, v2")
        for m in range(8):
            a(f"v_xor_b32 v5, {m}, v2")
            a(f"v_lshl_add_u32 v{12+m}, v5, 5, v4")
        for r in range(64, 128):
            a(f"v_mov_b32 v{r}, 0")
        a(f"v_mov_b32 v200, {f2u(-3.0e38):#x}")
        a("v_mov_b32 v201, 0")
        a("v_mov_b32 v204, 0")
        a(f"v_mov_b32 v205, {FLG}")
        a("s_lshl_b32 s49, s30, 2")
        a(f"s_add_u32 s49, s49, {M_NEXT - 4}")
        a("v_mov_b32 v206, s49")
        a(f"s_mov_b32 s57, {f2u(CSCALE):#x}")
        a("s_mov_b32 s58, 0xffff0000")
        lab("q_poll")
        a("global_load_dwordx4 v[128:131], v1, s[28:29] sc1")
        a("global_load_dwordx4 v[132:135], v1, s[28:29] offset:1024 sc1")
        a("s_waitcnt vmcnt(0)")
        a("v_cmp_ne_u32 s[64:65], s60, v129")
        a("v_cmp_ne_u32 s[66:67], s61, v131")
        a("v_cmp_ne_u32 s[68:69], s60, v133")
        a("v_cmp_ne_u32 s[70:71], s61, v135")
        a("s_or_b64 s[64:65], s[64:65], s[66:67]")
        a("s_or_b64 s[68:69], s[68:69], s[70:71]")
        a("s_or_b64 s[64:65], s[64:65], s[68:69]")
        a(f"s_cbranch_scc0 {ref('q_done')}")
        a("s_sleep 2")
        self.budget(ref('q_poll'))
        lab("q_done")
        a("s_lshl_b32 s48, s30, 10")
        a(f"s_add_u32 s48, s48, {QC - 1024}")
        a("v_lshlrev_b32 v1, 3, v0")
        a("v_add_u32 v1, s48, v1")
        a("v_mov_b32 v129, v130")
        a("v_mov_b32 v133, v134")
        a("ds_write_b64 v1, v[128:129]")
        a("ds_write_b64 v1, v[132:133] offset:512")
        a("v_and_b32 v1, 1, v0")
        a("v_lshlrev_b32 v1, 9, v1")
        a("v_and_b32 v2, 48, v0")
        a("v_add3_u32 v1, v1, v2, s48")
        a("s_waitcnt lgkmcnt(0)")
        for j in range(8):
            a(f"ds_read_b128 v[{32+4*j}:{35+4*j}], v1 offset:{j*64}")
        if self.diag:
            a("s_cmp_eq_u32 s30, 1")
            a(f"s_cbranch_scc0 {ref('nostamp6')}")
            self.stamp(6)
            lab("nostamp6")
        a("s_sub_u32 s50, s30, 1")
        a("s_mov_b32 s51, -64")
        a("s_mov_b32 s52, -1")
        lab("c_loop")
        a("s_lshl_b32 s53, s50, 1")
        a("s_add_u32 s53, s53, 2")
        a("s_cmp_ge_i32 s51, s53")
        a(f"s_cbranch_scc1 {ref('c_go')}")
        lab("c_wait")
        a("ds_read_b64 v[2:3], v205")
        a("s_waitcnt lgkmcnt(0)")
        a("v_readfirstlane_b32 s51, v2")
        a("v_readfirstlane_b32 s52, v3")
        a("s_cmp_ge_i32 s51, s53")
        a(f"s_cbranch_scc1 {ref('c_go')}")
        a("s_cmp_ge_u32 s50, s52")
        a(f"s_cbranch_scc1 {ref('c_end')}")
        a("s_sleep 1")
        self.budget(ref('c_wait'))
        a(f"s_branch {ref('c_end')}")
        lab("c_go")
        a(f"s_and_b32 s54, s50, {RING-1}")
        a("s_lshl_b32 s54, s54, 14")
        for m in range(4):
            a(f"v_add_u32 v{20+m}, s54, v{8+m}")
        for j in range(8):
            a(f"ds_read_b128 v[{128+4*j}:{131+4*j}], v{20+(j&3)} offset:{(j>>2)*256}")
        for m in range(8):
            a(f"v_add_u32 v{24+m}, s54, v{12+m}")
        def vrd(t):
            a(f"ds_read_b64_tr_b16 v[{160+2*t}:{161+2*t}], v{24+(t&7)} offset:{8192+(t>>3)*256}")
        for t in range(7): vrd(t)
        a("s_waitcnt lgkmcnt(7)")
        for j in range(8):
            cc = "0" if j == 0 else "v[192:195]"
            a(f"v_mfma_f32_16x16x32_bf16 v[192:195], v[{128+4*j}:{131+4*j}], v[{32+4*j}:{35+4*j}], {cc}")
            vrd(7 + j)
        vrd(15)
        a("s_add_u32 s50, s50, 3")
        a("v_mov_b32 v207, s50")
        a("s_nop 7")
        a("v_cvt_pk_bf16_f32 v196, v192, v193")
        a("v_cvt_pk_bf16_f32 v197, v194, v195")
        a("v_lshlrev_b32 v192, 16, v196")
        a("v_and_b32 v193, s58, v196")
        a("v_lshlrev_b32 v194, 16, v197")
        a("v_and_b32 v195, s58, v197")
        a("v_max3_f32 v198, v192, v193, v194")
        a("v_max3_f32 v198, v198, v195, v200")
        self.xreduce("v_max_f32", 198, 199)
        a("v_cmp_gt_f32 vcc, v198, v200")
        a(f"s_cbranch_vccz {ref('c_nors')}")
        a("v_sub_f32 v199, v200, v198")
        a("v_mul_f32 v199, s57, v199")
        a("v_exp_f32 v208, v199")
        a("v_mov_b32 v200, v198")
        a("v_mul_f32 v204, s57, v198")
        a("v_mul_f32 v201, v201, v208")
        for r in range(64, 128, 2):
            a(f"v_pk_mul_f32 v[{r}:{r+1}], v[{r}:{r+1}], v[208:209] op_sel_hi:[1,0]")
        lab("c_nors")
        for r in range(4):
            a(f"v_fma_f32 v{192+r}, v{192+r}, s57, -v204")
        for r in range(4):
            a(f"v_exp_f32 v{192+r}, v{192+r}")
        a("s_nop 0")
        a("v_cvt_pk_bf16_f32 v202, v192, v193")
        a("v_cvt_pk_bf16_f32 v203, v194, v195")
        a("v_add_f32 v192, v192, v193")
        a("v_add_f32 v194, v194, v195")
        a("s_waitcnt lgkmcnt(0)")
        a("ds_write_b32 v206, v207")
        for t in range(16):
            a(f"v_mfma_f32_16x16x16_bf16 v[{64+4*t}:{67+4*t}], v[{160+2*t}:{161+2*t}], v[202:203], v[{64+4*t}:{67+4*t}]")
            if t == 0: a("v_add_f32 v201, v201, v192")
            if t == 1: a("v_add_f32 v201, v201, v194")
        a(f"s_branch {ref('c_loop')}")
        lab("c_end")
        self.xreduce("v_add_f32", 201, 199)
        a("s_lshl_b32 s48, s30, 11")
        a(f"s_add_u32 s48, s48, {AUXB - 2048}")
        a("v_and_b32 v1, 1, v0")
        a("v_lshlrev_b32 v2, 10, v1")
        a("v_and_b32 v3, 48, v0")
        a("v_add3_u32 v2, v2, v3, s48")
        a("s_lshl_b32 s48, s30, 4")
        a(f"s_add_u32 s48, s48, {M_ML - 16}")
        a("v_lshl_add_u32 v3, v1, 3, s48")
        a("s_mov_b32 s48, 0x00030003")
        a("s_mov_b32 s49, 0x00030003")
        a("s_mov_b64 exec, s[48:49]")
        for t in range(16):
            a(f"ds_write_b128 v2, v[{64+4*t}:{67+4*t}] offset:{t*64}")
        a("s_mov_b64 exec, 3")
        a("ds_write_b64 v3, v[200:201]")
        a("s_mov_b64 exec, 1")
        a(f"v_mov_b32 v2, {M_CNT}")
        a("v_mov_b32 v3, 1")
        a("s_waitcnt lgkmcnt(0)")
        a("ds_add_rtn_u32 v4, v2, v3")
        a("s_waitcnt lgkmcnt(0)")
        a("v_readfirstlane_b32 s48, v4")
        a("s_mov_b64 exec, -1")
        a("s_cmp_eq_u32 s48, 2")
        a(f"s_cbranch_scc0 {ref('exit')}")
        self.stamp(7)
        a("v_lshlrev_b32 v1, 3, v0")
        a(f"v_add_u32 v1, {AUXB}, v1")
        a(f"v_mov_b32 v2, {M_ML}")
        for cidx in range(3):
            a(f"ds_read_b128 v[{8+4*cidx}:{11+4*cidx}], v2 offset:{cidx*16}")
        for cidx in range(3):
            for hh in range(2):
                r = 32 + cidx*8 + hh*4
                a(f"ds_read2st64_b64 v[{r}:{r+3}], v1 offset0:{cidx*4+hh*2} offset1:{cidx*4+hh*2+1}")
        a("s_lshl_b32 s48, s31, 17")
        a("s_lshl_b32 s49, s3, 7")
        a("s_add_u32 s48, s48, s49")
        a(f"s_add_u32 s48, s48, {W_OG}")
        a("v_lshrrev_b32 v3, 3, v0")
        a("v_lshlrev_b32 v3, 12, v3")
        a("v_and_b32 v4, 7, v0")
        a("v_lshl_add_u32 v3, v4, 4, v3")
        a("v_add_u32 v3, s48, v3")
        for n in range(1, 4):
            a(f"v_add_u32 v{3+n}, {n*8*4096}, v3")
        a("s_waitcnt lgkmcnt(6)")
        a("v_max3_f32 v20, v8, v12, v16")
        a("v_max3_f32 v21, v10, v14, v18")
        for cidx in range(3):
            for hh in range(2):
                a(f"v_sub_f32 v{22+2*cidx+hh}, v{8+4*cidx+2*hh}, v{20+hh}")
        for r in range(22, 28): a(f"v_mul_f32 v{r}, s57, v{r}")
        for r in range(22, 28): a(f"v_exp_f32 v{r}, v{r}")
        a("s_nop 0")
        for hh in range(2):
            a(f"v_mul_f32 v{28+hh}, v{22+hh}, v{9+2*hh}")
            a(f"v_fmac_f32 v{28+hh}, v{24+hh}, v{13+2*hh}")
            a(f"v_fmac_f32 v{28+hh}, v{26+hh}, v{17+2*hh}")
        a("s_waitcnt lgkmcnt(0)")
        for n in range(4):
            hh = n >> 1
            g0 = 64 + 4*n
            for e in range(2):
                src = lambda cidx: 32 + cidx*8 + n*2 + e
                a(f"v_mul_f32 v{g0+2*e}, v{22+hh}, v{src(0)}")
                a(f"v_fmac_f32 v{g0+2*e}, v{24+hh}, v{src(1)}")
                a(f"v_fmac_f32 v{g0+2*e}, v{26+hh}, v{src(2)}")
            a(f"v_mov_b32 v{g0+1}, s60")
            a(f"v_mov_b32 v{g0+3}, s61")
            a(f"global_store_dwordx4 v{3+n}, v[{g0}:{g0+3}], s[28:29] sc1")
        a("v_cmp_eq_u32 vcc, 1, v0")
        a("s_lshl_b32 s48, s31, 10")
        a("s_lshl_b32 s49, s3, 4")
        a("s_add_u32 s48, s48, s49")
        a(f"s_add_u32 s48, s48, {W_ML}")
        a("v_cndmask_b32 v80, v20, v21, vcc")
        a("v_mov_b32 v81, s60")
        a("v_cndmask_b32 v82, v28, v29, vcc")
        a("v_mov_b32 v83, s61")
        a("v_lshl_add_u32 v2, v0, 9, s48")
        a("s_mov_b64 exec, 3")
        a("global_store_dwordx4 v2, v[80:83], s[28:29] sc1")
        self.stamp(8)
        a("s_endpgm")


HEAD = open("cdna_kernels/" + NAME + ".s.ref").read().split("; Override launch geometry")[0]

def emit(path, **kw):
    g = Gen(**kw)
    body = g.build()
    src = HEAD + f"""; Generated by gen/gen.py ({kw}).
; One workgroup per CU: wave 0 streams K/V tiles into an LDS ring (LDS-DMA), waves 1-3 run QK^T / online softmax / PV.
; @launch grid=(256,1,1) block=(256,1,1) lds={LDS_BYTES}
.amdgcn_target "amdgcn-amd-amdhsa--gfx950"
.text
.globl {NAME}_kernel
.p2align 8
.type {NAME}_kernel,@function
{NAME}_kernel:
{body}
.section .rodata,"a"
.p2align 6
.amdhsa_kernel {NAME}_kernel
  .amdhsa_next_free_vgpr 256
  .amdhsa_next_free_sgpr 102
  .amdhsa_accum_offset 256
  .amdhsa_group_segment_fixed_size 0
  .amdhsa_kernarg_size 104
  .amdhsa_user_sgpr_count 2
  .amdhsa_user_sgpr_kernarg_segment_ptr 1
  .amdhsa_system_sgpr_workgroup_id_x 1
.end_amdhsa_kernel
"""
    open(path, "w").write(src)

if __name__ == "__main__":
    out = sys.argv[1] if len(sys.argv) > 1 else "cdna_kernels/" + NAME + ".s"
    kw = {}
    for x in sys.argv[2:]:
        k, v = x.split("=")
        kw[k] = v if k in ("pol", "wpol", "polv") else int(v)
    emit(out, **kw)
```
